```python
import torch

def _softmax(x, axis=-1):
    return torch.softmax(x, dim=axis)
def _gelu(x):
    return torch.nn.functional.gelu(x, approximate="tanh")
def _silu(x):
    return torch.nn.functional.silu(x)
def _sigmoid(x):
    return torch.sigmoid(x)
def _layernorm(x, axis=-1, eps=1e-5):
    m = x.mean(dim=axis, keepdim=True)
    v = x.var(dim=axis, keepdim=True, unbiased=False)
    return (x - m) / torch.sqrt(v + eps)
def _scatter_add(tgt, idx, src, axis=0):
    return tgt.clone().index_add_(axis, idx, src)
def _segment_sum(src, seg, n):
    out = torch.zeros((n,) + src.shape[1:], dtype=src.dtype)
    return out.index_add_(0, seg, src)
def _pad(x, pw):
    flat = tuple(v for pair in reversed(pw) for v in pair)
    return torch.nn.functional.pad(x, flat)

kernel_name = 'standalone__paged_block_table_kv_pagedattention__decode'

def setup_inputs():

    _w = (lambda a: (lambda t: t.to(torch.bfloat16) if t.is_floating_point() else t)(torch.as_tensor(a)))
    B, Hq, Hkv, Sq, Skv, D = 2, 32, 16, 1, 8192, 128
    bs = 16
    nbps = max(1, Skv // bs)
    num_phys = B * nbps + 4
    bt = torch.randperm(num_phys)[: B * nbps].reshape(B, nbps).to(torch.int64)
    cl = (nbps * bs - (torch.arange(1, B + 1, dtype=torch.int64) * 2654435761) % max(1, nbps * bs // 2)).to(torch.int64)
    return {
        "q": _w((lambda *s: torch.randn(*s, dtype=torch.bfloat16) * 0.8)(B, Hq, Sq, D)),
        "k_cache": _w((lambda *s: torch.randn(*s, dtype=torch.bfloat16) * 0.8)(num_phys, bs, Hkv, D)),
        "v_cache": _w((lambda *s: torch.randn(*s, dtype=torch.bfloat16) * 0.05)(num_phys, bs, Hkv, D)),
        "block_table": _w(bt),
        "context_lens": _w(cl),
    }

def reference(q, k_cache, v_cache, block_table, context_lens):
    B, Hq, Sq, D = q.shape
    bs = k_cache.shape[1]
    Hkv = k_cache.shape[2]
    nbps = block_table.shape[1]
    Skv = nbps * bs
    bt = block_table.reshape(-1)
    k = (lambda x, *d: x.permute(*d))(k_cache[bt].reshape(B, Skv, Hkv, D), 0, 2, 1, 3)
    v = (lambda x, *d: x.permute(*d))(v_cache[bt].reshape(B, Skv, Hkv, D), 0, 2, 1, 3)
    g = Hq // Hkv
    qg = q.reshape(B, Hkv, g, Sq, D)
    scores = torch.einsum("bhgqd,bhkd->bhgqk", qg, k) * (D ** -0.5)
    pos = torch.arange(Skv)
    msk = pos[None, :] < context_lens[:, None]
    scores = torch.where(msk[:, None, None, None, :], scores, -1e9)
    p = _softmax(scores, axis=-1)
    out = torch.einsum("bhgqk,bhkd->bhgqd", p, v)
    return out.reshape(B, Hq, Sq, D)
```

```python
import sys, math, struct
NAME = "standalone__paged_block_table_kv_pagedattention__decode"
HDR = open("cdna_kernels/" + NAME + ".s.ref").read().split("; Override launch")[0]

KV_BYTES = 1028 * 65536
RS = 528
LDS_MX = 0
LDS_LS = 128
LDS_FLAG = 256
LDS_O = 512
LDS_BYTES = LDS_O + 64 * RS
WS_ML = 1 << 21


def f32bits(x):
    return struct.unpack("<I", struct.pack("<f", x))[0]


def gen(xmap=1, nt=True, stamp=False, skip=True):
    L = []
    A = L.append
    fl = " nt" if nt else ""

    def nop(n):
        if n > 0:
            A(f"    s_nop {n-1}")

    A(HDR.rstrip())
    A(f"; @launch grid=(512,1,1) block=(256,1,1) lds={LDS_BYTES}")
    A('.amdgcn_target "amdgcn-amd-amdhsa--gfx950"')
    A(".text")
    A(f".globl {NAME}_kernel")
    A(".p2align 8")
    A(f".type {NAME}_kernel,@function")
    A(f"{NAME}_kernel:")
    A("    s_cmp_ge_u32 s2, 512")
    A("    s_cbranch_scc1 L_end")
    A("    s_load_dwordx16 s[4:19], s[0:1], 0")
    if stamp:
        A("    s_memrealtime s[80:81]")
    A("    v_lshrrev_b32 v1, 6, v0")
    A("    v_and_b32 v0, 63, v0")
    A("    v_readfirstlane_b32 s20, v1")
    A("    s_lshr_b32 s21, s2, 8")
    if xmap == 1:
        A("    s_lshr_b32 s22, s2, 3")
        A("    s_and_b32 s22, s22, 7")
        A("    s_lshr_b32 s23, s2, 6")
        A("    s_and_b32 s23, s23, 3")
        A("    s_lshl_b32 s23, s23, 3")
        A("    s_and_b32 s24, s2, 7")
        A("    s_or_b32 s23, s23, s24")
    else:
        A("    s_and_b32 s22, s2, 7")
        A("    s_lshr_b32 s23, s2, 3")
        A("    s_and_b32 s23, s23, 31")
    A("    s_mul_i32 s24, s21, 31")
    A("    s_xor_b32 s23, s23, s24")
    A("    s_lshl_b32 s25, s20, 5")
    A("    s_add_u32 s25, s25, s23")
    A("    s_lshl_b32 s27, s21, 9")
    A("    s_add_u32 s27, s27, s25")
    A("    s_lshl_b32 s27, s27, 2")
    A("    v_lshrrev_b32 v2, 5, v0")
    A("    v_and_b32 v3, 31, v0")
    A("    v_lshlrev_b32 v1, 12, v2")
    A("    v_lshl_add_u32 v1, v3, 4, v1")
    A("    s_lshl_b32 s26, s22, 9")
    A("    v_add_u32 v1, s26, v1")
    A("    v_bfe_u32 v4, v0, 4, 1")
    A("    v_and_b32 v5, 1, v0")
    A("    v_lshl_add_u32 v6, v4, 1, v5")
    A("    v_and_b32 v7, 15, v0")
    A("    v_lshlrev_b32 v8, 8, v6")
    A("    v_lshl_add_u32 v14, v7, 4, v8")
    A("    v_xor_b32 v15, 16, v14")
    A("    s_lshl_b32 s28, s21, 3")
    A("    s_add_u32 s28, s28, s22")
    A("    s_lshl_b32 s31, s28, 10")
    A("    s_waitcnt lgkmcnt(0)")
    A("    s_add_u32 s10, s10, s27")
    A("    s_addc_u32 s11, s11, 0")
    for j in range(4):
        A(f"    s_load_dword s{56+j}, s[10:11], {j*512}")
    A("    s_load_dwordx2 s[66:67], s[12:13], 0")
    A("    s_mov_b32 s40, s4"); A("    s_mov_b32 s41, s5"); A("    s_mov_b32 s42, 16384"); A("    s_mov_b32 s43, 0x20000")
    A("    buffer_load_dwordx4 v[84:87], v14, s[40:43], s31 offen")
    A("    buffer_load_dwordx4 v[88:91], v15, s[40:43], s31 offen")
    A("    s_mov_b32 s32, s6"); A("    s_mov_b32 s33, s7"); A(f"    s_mov_b32 s34, {KV_BYTES}"); A("    s_mov_b32 s35, 0x20000")
    A("    s_mov_b32 s36, s8"); A("    s_mov_b32 s37, s9"); A(f"    s_mov_b32 s38, {KV_BYTES}"); A("    s_mov_b32 s39, 0x20000")
    A("    s_mov_b32 s44, s18"); A("    s_mov_b32 s45, s19"); A(f"    s_mov_b32 s46, {1<<22}"); A("    s_mov_b32 s47, 0x20000")
    A("    s_mov_b32 s48, s14"); A("    s_mov_b32 s49, s15"); A("    s_mov_b32 s50, 16384"); A("    s_mov_b32 s51, 0x20000")
    A("    s_mov_b32 s52, s16"); A("    s_mov_b32 s53, s17"); A("    s_mov_b32 s54, 256"); A("    s_mov_b32 s55, 0x20000")
    A("    s_cmp_eq_u32 s21, 0")
    A("    s_waitcnt lgkmcnt(0)")
    A("    s_cselect_b32 s29, s66, s67")
    A("    s_cmp_lt_i32 s29, 1")
    A("    s_cselect_b32 s68, 1, 0")
    A("    s_cselect_b32 s29, 8192, s29")
    A("    s_min_i32 s29, s29, 8192")
    A("    s_lshl_b32 s30, s25, 4")
    A("    s_sub_i32 s60, s29, s30")
    for j in range(1, 4):
        A(f"    s_sub_i32 s{60+j}, s60, {j*2048}")
    for j in range(4):
        A(f"    s_lshl_b32 s{56+j}, s{56+j}, 16")
        A(f"    s_cmp_gt_i32 s{60+j}, 0")
        A(f"    s_cselect_b32 s{56+j}, s{56+j}, 0x7f000000")

    SLOT = 96

    def issue(srd, j):
        for i in range(8):
            r = SLOT + 32 * j + 4 * i
            if i == 0:
                so = f"s{56+j}"
            else:
                A(f"    s_add_u32 s30, s{56+j}, {i*8192}")
                so = "s30"
            A(f"    buffer_load_dwordx4 v[{r}:{r+3}], v1, {srd}, {so} offen{fl}")

    for j in range(4):
        issue("s[32:35]", j)
    A("    s_mov_b32 s64, 0x05040100")
    A("    s_mov_b32 s65, 0x07060302")
    A(f"    s_mov_b32 s69, {f32bits(128 ** -0.5 * math.log2(math.e)):#x}")
    A("    v_bfe_u32 v8, v0, 2, 2")
    A("    v_lshl_add_u32 v10, v8, 1, v2")
    A("    v_add_u32 v9, 8, v10")
    A("    v_mov_b32 v13, 0xff800000")
    A("    v_bfe_u32 v11, v0, 1, 1")
    A("    v_cmp_eq_u32 vcc, v11, v4")
    A("    v_and_b32 v12, 1, v8")
    A("    v_lshlrev_b32 v12, 4, v12")
    A("    v_mov_b32 v11, 0xffff")
    A("    v_lshlrev_b32 v12, v12, v11")
    A("    v_cndmask_b32 v12, 0, v12, vcc")
    A("    v_cmp_gt_u32 vcc, 2, v8")
    nop(2)
    A("    v_cndmask_b32 v11, 0, v12, vcc")
    A("    v_cndmask_b32 v12, v12, 0, vcc")
    for r in range(32, 64):
        A(f"    v_mov_b32 v{r}, 0")
    for r in range(24, 32):
        A(f"    v_mov_b32 v{r}, v13")
    A("    v_mov_b32 v92, 0")
    A("    v_lshlrev_b32 v93, 5, v6")
    A("    s_lshl_b32 s30, s20, 3")
    A("    v_lshl_add_u32 v94, v2, 2, v93")
    A("    v_add_u32 v94, s30, v94")
    A("    s_cmp_eq_u32 s68, 0")
    A("    s_cbranch_scc1 L_qok")
    A("    s_waitcnt vmcnt(32)")
    for r in range(84, 92):
        A(f"    v_mov_b32 v{r}, 0")
    A("L_qok:")

    X = 16
    for j in range(4):
        R = SLOT + 32 * j
        if skip:
            A(f"    s_cmp_le_i32 s{60+j}, 0")
            A(f"    s_cbranch_scc1 L_kskip{j}")
        for g in range(2):
            A(f"    s_waitcnt vmcnt({28 - 4*g})")
            for w in range(4):
                for i in range(4 * g, 4 * g + 4):
                    if w == 0:
                        A(f"    v_dot2_f32_bf16 v{X+i}, v{R+4*i+w}, v{84+w}, 0")
                    else:
                        A(f"    v_dot2c_f32_bf16 v{X+i}, v{R+4*i+w}, v{84+w}")
            for w in range(4):
                for i in range(4 * g, 4 * g + 4):
                    A(f"    v_dot2c_f32_bf16_dpp v{X+i}, v{R+4*i+w}, v{88+w} quad_perm:[1,0,3,2] row_mask:0xf bank_mask:0xf")
        for g in range(2):
            x = X + 4 * g
            y0, y1 = 64 + 2 * g, 65 + 2 * g
            A(f"    v_add_f32_dpp v{y0}, v{x+0}, v{x+0} row_ror:8 row_mask:0xf bank_mask:0x3")
            A(f"    v_add_f32_dpp v{y0}, v{x+2}, v{x+2} row_ror:8 row_mask:0xf bank_mask:0xc")
            A(f"    v_add_f32_dpp v{y1}, v{x+1}, v{x+1} row_ror:8 row_mask:0xf bank_mask:0x3")
            A(f"    v_add_f32_dpp v{y1}, v{x+3}, v{x+3} row_ror:8 row_mask:0xf bank_mask:0xc")
        for g in range(2):
            y0, y1 = 64 + 2 * g, 65 + 2 * g
            z = 68 + g
            A(f"    v_add_f32_dpp v{z}, v{y0}, v{y0} row_shl:4 row_mask:0xf bank_mask:0x5")
            A(f"    v_add_f32_dpp v{z}, v{y1}, v{y1} row_shr:4 row_mask:0xf bank_mask:0xa")
        A(f"    v_cmp_gt_i32 vcc, s{60+j}, v10")
        A(f"    v_cmp_gt_i32 s[70:71], s{60+j}, v9")
        A("    v_add_f32_dpp v68, v68, v68 quad_perm:[2,3,0,1] row_mask:0xf bank_mask:0xf")
        A("    v_add_f32_dpp v69, v69, v69 quad_perm:[2,3,0,1] row_mask:0xf bank_mask:0xf")
        A(f"    v_cndmask_b32 v{24+2*j}, v13, v68, vcc")
        A(f"    v_cndmask_b32 v{25+2*j}, v13, v69, s[70:71]")
        if skip:
            A(f"L_kskip{j}:")
            A("    s_waitcnt vmcnt(24)")
        issue("s[36:39]", j)
    A("    v_max3_f32 v64, v24, v25, v26")
    A("    v_max3_f32 v65, v27, v28, v29")
    A("    v_max3_f32 v64, v64, v30, v31")
    A("    v_mov_b32 v66, 0xf149f2ca")
    A("    v_max3_f32 v64, v64, v65, v66")
    nop(2)
    A("    v_max_f32_dpp v64, v64, v64 row_ror:4 row_mask:0xf bank_mask:0xf")
    nop(2)
    A("    v_max_f32_dpp v64, v64, v64 row_ror:8 row_mask:0xf bank_mask:0xf")
    A(f"    ds_write_b32 v94, v64 offset:{LDS_MX}")
    A("    s_waitcnt lgkmcnt(0)")
    A("    s_barrier")
    A(f"    ds_read_b128 v[64:67], v93 offset:{LDS_MX}")
    A(f"    ds_read_b128 v[68:71], v93 offset:{LDS_MX+16}")
    A("    s_waitcnt lgkmcnt(0)")
    A("    v_max3_f32 v64, v64, v65, v66")
    A("    v_max3_f32 v68, v68, v69, v70")
    A("    v_max3_f32 v64, v64, v67, v71")
    A("    v_max_f32 v64, v64, v68")
    A("    v_mul_f32 v95, s69, v64")
    PB = 224
    for k in range(8):
        A(f"    v_fma_f32 v{24+k}, v{24+k}, s69, -v95")
    for k in range(8):
        A(f"    v_exp_f32 v{24+k}, v{24+k}")
    for k in range(8):
        A(f"    v_cvt_pk_bf16_f32 v{24+k}, v{24+k}, v{24+k}")
    for k in range(8):
        A(f"    v_and_b32 v{PB+2*k}, v{24+k}, v11")
        A(f"    v_and_b32 v{PB+2*k+1}, v{24+k}, v12")
        A(f"    v_and_b32 v{24+k}, 0xffff0000, v{24+k}")
    for k in range(8):
        A(f"    v_add_f32 v92, v92, v{24+k}")
    nop(2)
    A("    v_add_f32_dpp v92, v92, v92 row_ror:4 row_mask:0xf bank_mask:0xf")
    nop(2)
    A("    v_add_f32_dpp v92, v92, v92 row_ror:8 row_mask:0xf bank_mask:0xf")
    A(f"    ds_write_b32 v94, v92 offset:{LDS_LS}")
    for j in range(4):
        R = SLOT + 32 * j
        if skip:
            A(f"    s_cmp_le_i32 s{60+j}, 0")
            A(f"    s_cbranch_scc1 L_vdone")
        A(f"    s_waitcnt vmcnt({8*(3-j)})")
        for e in range(8):
            T = 64 + 4 * (e % 4)
            sel = "s64" if e % 2 == 0 else "s65"
            for p in range(4):
                A(f"    v_perm_b32 v{T+p}, v{R+4*(2*p+1)+(e>>1)}, v{R+4*(2*p)+(e>>1)}, {sel}")
            if e >= 1:
                ep = e - 1
                Tp = 64 + 4 * (ep % 4)
                A(f"    v_mfma_f32_16x16x32_bf16 v[{32+4*ep}:{35+4*ep}], v[{Tp}:{Tp+3}], v[{PB+4*j}:{PB+4*j+3}], v[{32+4*ep}:{35+4*ep}]")
        nop(1)
        A(f"    v_mfma_f32_16x16x32_bf16 v[60:63], v[76:79], v[{PB+4*j}:{PB+4*j+3}], v[60:63]")
    A("L_vdone:")
    A("    s_waitcnt vmcnt(0)")
    A(f"    s_mul_i32 s30, s20, {16*RS}")
    A(f"    v_mul_u32_u24 v64, {RS}, v7")
    A("    v_lshrrev_b32 v65, 4, v0")
    A("    v_lshl_add_u32 v64, v65, 7, v64")
    A("    v_add_u32 v64, s30, v64")
    A(f"    v_mul_u32_u24 v66, {32*RS}, v2")
    A("    v_lshl_add_u32 v66, v3, 4, v66")
    A(f"    s_mul_i32 s30, s20, {RS}")
    A("    v_add_u32 v66, s30, v66")
    nop(2)
    for e in range(8):
        A(f"    ds_write_b128 v64, v[{32+4*e}:{35+4*e}] offset:{LDS_O+16*e}")
    A("    s_waitcnt lgkmcnt(0)")
    A("    s_barrier")
    for k in range(8):
        off = LDS_O + ((k >> 2) * 16 + (k & 3) * 4) * RS
        A(f"    ds_read_b128 v[{96+4*k}:{99+4*k}], v66 offset:{off}")
    A("    s_lshl_b32 s30, s20, 5")
    A("    v_mov_b32 v67, s30")
    A(f"    ds_read_b128 v[128:131], v67 offset:{LDS_LS}")
    A(f"    ds_read_b128 v[132:135], v67 offset:{LDS_LS+16}")
    A(f"    ds_read_b128 v[136:139], v67 offset:{LDS_MX}")
    A(f"    ds_read_b128 v[140:143], v67 offset:{LDS_MX+16}")
    A("    s_lshl_b32 s30, s28, 5")
    A("    s_add_u32 s30, s30, s23")
    A("    s_lshl_b32 s30, s30, 2")
    A("    s_add_u32 s30, s30, s20")
    A("    s_lshl_b32 s72, s30, 9")
    A("    s_lshl_b32 s73, s28, 2")
    A("    s_add_u32 s73, s73, s20")
    A("    s_lshl_b32 s73, s73, 8")
    A(f"    s_add_u32 s73, s73, {WS_ML}")
    A("    s_and_b32 s30, s23, 1")
    A("    s_lshl_b32 s30, s30, 7")
    A("    s_lshr_b32 s74, s23, 1")
    A("    s_lshl_b32 s74, s74, 3")
    A("    s_add_u32 s74, s74, s30")
    A("    s_add_u32 s74, s74, s73")
    A("    v_lshlrev_b32 v68, 4, v3")
    A("    s_waitcnt lgkmcnt(4)")
    for c in range(4):
        A(f"    v_add_f32 v{96+c}, v{96+c}, v{100+c}")
        A(f"    v_add_f32 v{104+c}, v{104+c}, v{108+c}")
        A(f"    v_add_f32 v{112+c}, v{112+c}, v{116+c}")
        A(f"    v_add_f32 v{120+c}, v{120+c}, v{124+c}")
    for c in range(4):
        A(f"    v_add_f32 v{96+c}, v{96+c}, v{104+c}")
        A(f"    v_add_f32 v{112+c}, v{112+c}, v{120+c}")
    for c in range(4):
        A(f"    v_add_f32 v{96+c}, v{96+c}, v{112+c}")
    for c in range(4):
        A(f"    v_mov_b32 v{100+c}, v{96+c}")
    A("    s_waitcnt lgkmcnt(0)")
    A("    v_permlane32_swap_b32 v96, v100")
    A("    v_permlane32_swap_b32 v97, v101")
    A("    v_permlane32_swap_b32 v98, v102")
    A("    v_permlane32_swap_b32 v99, v103")
    A("    v_add_f32 v128, v128, v129")
    A("    v_add_f32 v130, v130, v131")
    A("    v_add_f32 v132, v132, v133")
    A("    v_add_f32 v134, v134, v135")
    for c in range(4):
        A(f"    v_add_f32 v{96+c}, v{96+c}, v{100+c}")
    A("    v_add_f32 v128, v128, v130")
    A("    v_add_f32 v132, v132, v134")
    A("    v_max3_f32 v136, v136, v137, v138")
    A("    v_max3_f32 v140, v140, v141, v142")
    A("    v_max3_f32 v136, v136, v139, v143")
    A("    v_add_f32 v129, v128, v132")
    A("    v_max_f32 v136, v136, v140")
    A("    v_mul_f32 v128, s69, v136")
    A("    v_mov_b32 v69, 0")
    A("    s_mov_b32 exec_hi, 0")
    A("    buffer_store_dwordx4 v[96:99], v68, s[44:47], s72 offen sc1")
    A("    s_mov_b64 exec, 1")
    A("    buffer_store_dwordx2 v[128:129], v69, s[44:47], s74 offen sc1")
    A("    s_mov_b64 exec, -1")
    A("    s_waitcnt vmcnt(0)")
    A("    s_barrier")
    A("    s_cmp_lg_u32 s20, 0")
    A("    s_cbranch_scc1 L_noatom")
    A("    s_lshl_b32 s30, s28, 2")
    A("    v_mov_b32 v70, 1")
    A("    s_mov_b64 exec, 1")
    A("    buffer_atomic_add v70, v69, s[52:55], s30 offen sc0")
    A("    s_waitcnt vmcnt(0)")
    A(f"    ds_write_b32 v69, v70 offset:{LDS_FLAG}")
    A("    s_mov_b64 exec, -1")
    A("    s_waitcnt lgkmcnt(0)")
    A("L_noatom:")
    A("    s_barrier")
    A(f"    ds_read_b32 v70, v69 offset:{LDS_FLAG}")
    A("    s_waitcnt lgkmcnt(0)")
    A("    v_readfirstlane_b32 s30, v70")
    A("    s_cmp_lg_u32 s30, 31")
    A("    s_cbranch_scc1 L_fin")
    A("    v_lshlrev_b32 v70, 7, v2")
    for k in range(8):
        A(f"    buffer_load_dwordx4 v[{160+4*k}:{163+4*k}], v70, s[44:47], s73 offen offset:{16*k} sc1")
    A("    v_lshl_add_u32 v71, v2, 11, v68")
    A("    s_lshl_b32 s30, s28, 7")
    A("    s_add_u32 s30, s30, s20")
    A("    s_lshl_b32 s30, s30, 9")
    for k in range(16):
        A(f"    buffer_load_dwordx4 v[{96+4*k}:{99+4*k}], v71, s[44:47], s30 offen sc1")
        if k < 15:
            A("    s_add_u32 s30, s30, 4096")
    A("    s_waitcnt vmcnt(16)")
    A("    v_max3_f32 v64, v160, v162, v164")
    A("    v_max3_f32 v65, v166, v168, v170")
    A("    v_max3_f32 v66, v172, v174, v176")
    A("    v_max3_f32 v67, v178, v180, v182")
    A("    v_max3_f32 v64, v64, v184, v186")
    A("    v_max3_f32 v65, v65, v188, v190")
    A("    v_max3_f32 v64, v64, v65, v66")
    A("    v_max_f32 v64, v64, v67")
    A("    v_mov_b32 v65, v64")
    nop(2)
    A("    v_permlane32_swap_b32 v64, v65")
    A("    v_max_f32 v64, v64, v65")
    for k in range(16):
        A(f"    v_sub_f32 v{160+2*k}, v{160+2*k}, v64")
    for k in range(16):
        A(f"    v_exp_f32 v{160+2*k}, v{160+2*k}")
    A("    v_mul_f32 v72, v160, v161")
    for k in range(1, 16):
        A(f"    v_fmac_f32 v72, v{160+2*k}, v{161+2*k}")
    for k in range(16):
        A(f"    s_waitcnt vmcnt({15-k})")
        for c in range(4):
            if k == 0:
                A(f"    v_mul_f32 v{64+c}, v160, v{96+c}")
            else:
                A(f"    v_fmac_f32 v{64+c}, v{160+2*k}, v{96+4*k+c}")
    for c in range(4):
        A(f"    v_mov_b32 v{76+c}, v{64+c}")
    A("    v_mov_b32 v73, v72")
    nop(1)
    for c in range(4):
        A(f"    v_permlane32_swap_b32 v{64+c}, v{76+c}")
    A("    v_permlane32_swap_b32 v72, v73")
    for c in range(4):
        A(f"    v_add_f32 v{64+c}, v{64+c}, v{76+c}")
    A("    v_add_f32 v72, v72, v73")
    A("    v_rcp_f32 v72, v72")
    A("    v_lshrrev_b32 v74, 3, v3")
    A("    v_and_b32 v75, 7, v3")
    A("    v_lshl_add_u32 v74, v74, 5, v75")
    A("    v_lshlrev_b32 v74, 1, v74")
    A("    s_lshl_b32 s30, s28, 2")
    A("    s_add_u32 s30, s30, s20")
    A("    s_lshl_b32 s30, s30, 8")
    for c in range(4):
        A(f"    v_mul_f32 v{64+c}, v{64+c}, v72")
    A("    v_cvt_pk_bf16_f32 v64, v64, v65")
    A("    v_cvt_pk_bf16_f32 v66, v66, v67")
    A("    s_mov_b32 exec_hi, 0")
    A("    buffer_store_short v64, v74, s[48:51], s30 offen")
    A("    buffer_store_short_d16_hi v64, v74, s[48:51], s30 offen offset:16")
    A("    buffer_store_short v66, v74, s[48:51], s30 offen offset:32")
    A("    buffer_store_short_d16_hi v66, v74, s[48:51], s30 offen offset:48")
    A("    s_mov_b64 exec, -1")
    A("L_fin:")
    if stamp:
        A("    s_waitcnt vmcnt(0)")
        A("    s_memrealtime s[82:83]")
        A("    s_add_u32 s76, s18, 0x8000000")
        A("    s_addc_u32 s77, s19, 0")
        A("    s_mov_b32 s78, 0x100000")
        A("    s_mov_b32 s79, 0x20000")
        A("    s_lshl_b32 s30, s2, 2")
        A("    s_add_u32 s30, s30, s20")
        A("    s_lshl_b32 s30, s30, 4")
        A("    s_waitcnt lgkmcnt(0)")
        A("    v_mov_b32 v8, s80"); A("    v_mov_b32 v9, s81"); A("    v_mov_b32 v10, s82"); A("    v_mov_b32 v11, s83")
        A("    s_mov_b64 exec, 1")
        A("    buffer_store_dwordx4 v[8:11], v69, s[76:79], s30 offen")
    A("L_end:")
    A("    s_endpgm")
    A('.section .rodata,"a"')
    A(".p2align 6")
    A(f".amdhsa_kernel {NAME}_kernel")
    A("  .amdhsa_next_free_vgpr 240")
    A("  .amdhsa_next_free_sgpr 96")
    A("  .amdhsa_accum_offset 240")
    A("  .amdhsa_group_segment_fixed_size 0")
    A("  .amdhsa_kernarg_size 64")
    A("  .amdhsa_user_sgpr_count 2")
    A("  .amdhsa_user_sgpr_kernarg_segment_ptr 1")
    A("  .amdhsa_system_sgpr_workgroup_id_x 1")
    A(".end_amdhsa_kernel")
    return "\n".join(L) + "\n"


if __name__ == "__main__":
    open("v1.s", "w").write(gen())
    open("v1_st.s", "w").write(gen(stamp=True))
    open("v1_x0_st.s", "w").write(gen(stamp=True, xmap=0))
    open("cdna_kernels/" + NAME + ".s", "w").write(gen())
```

```python
import sys, math, struct
NAME = "standalone__paged_block_table_kv_pagedattention__decode"
HDR = open("cdna_kernels/" + NAME + ".s.ref").read().split("; Override launch")[0]

KV_BYTES = 1028 * 65536
RS = 528
LDS_MX = 0
LDS_LS = 128
LDS_FLAG = 384
LDS_O = 512
LDS_BYTES = LDS_O + 128 * RS
WS_ML = 1 << 21


def f32bits(x):
    return struct.unpack("<I", struct.pack("<f", x))[0]


def gen(nt=True, stamp=False, skip=True, pad=0, cshift=2):
    L = []
    A = L.append
    fl = " nt" if nt else ""

    def st(k):
        if stamp:
            A("    s_memrealtime s[82:83]")
            A("    s_waitcnt lgkmcnt(0)")
            A(f"    s_mov_b32 s{84+k}, s82")

    def nop(n):
        if n > 0:
            A(f"    s_nop {n-1}")

    A(HDR.rstrip())
    A(f"; @launch grid=(256,1,1) block=(512,1,1) lds={LDS_BYTES}")
    A('.amdgcn_target "amdgcn-amd-amdhsa--gfx950"')
    A(".text")
    A(f".globl {NAME}_kernel")
    A(".p2align 8")
    A(f".type {NAME}_kernel,@function")
    A(f"{NAME}_kernel:")
    A("    s_cmp_ge_u32 s2, 256")
    A("    s_cbranch_scc1 L_end")
    A("    s_load_dwordx16 s[4:19], s[0:1], 0")
    if stamp or pad:
        A("    s_memrealtime s[80:81]")
    A("    v_lshrrev_b32 v1, 6, v0")
    A("    v_and_b32 v0, 63, v0")
    A("    v_readfirstlane_b32 s3, v1")
    A("    s_lshr_b32 s22, s2, 3")
    A("    s_and_b32 s75, s22, 7")
    A("    s_lshr_b32 s23, s2, 6")
    A("    s_lshl_b32 s23, s23, 3")
    A("    s_and_b32 s24, s2, 7")
    A("    s_or_b32 s23, s23, s24")
    A("    s_lshr_b32 s21, s3, 2")
    A("    s_and_b32 s20, s3, 3")
    A("    s_xor_b32 s22, s75, s21")
    A("    s_mul_i32 s24, s21, 31")
    A("    s_xor_b32 s23, s23, s24")
    A("    s_lshl_b32 s25, s20, 5")
    A("    s_add_u32 s25, s25, s23")
    A("    s_lshl_b32 s27, s21, 9")
    A("    s_add_u32 s27, s27, s25")
    A("    s_lshl_b32 s27, s27, 2")
    A("    v_lshrrev_b32 v2, 5, v0")
    A("    v_and_b32 v3, 31, v0")
    A("    v_lshlrev_b32 v1, 12, v2")
    A("    v_lshl_add_u32 v1, v3, 4, v1")
    A("    s_lshl_b32 s26, s22, 9")
    A("    v_add_u32 v1, s26, v1")
    A("    v_bfe_u32 v4, v0, 4, 1")
    A("    v_and_b32 v5, 1, v0")
    A("    v_lshl_add_u32 v6, v4, 1, v5")
    A("    v_and_b32 v7, 15, v0")
    A("    v_lshlrev_b32 v8, 8, v6")
    A("    v_lshl_add_u32 v14, v7, 4, v8")
    A("    v_xor_b32 v15, 16, v14")
    A("    s_lshl_b32 s28, s21, 3")
    A("    s_add_u32 s28, s28, s22")
    A("    s_lshl_b32 s31, s28, 10")
    A("    s_waitcnt lgkmcnt(0)")
    A("    s_add_u32 s10, s10, s27")
    A("    s_addc_u32 s11, s11, 0")
    for j in range(4):
        A(f"    s_load_dword s{56+j}, s[10:11], {j*512}")
    A("    s_load_dwordx2 s[66:67], s[12:13], 0")
    A("    s_mov_b32 s40, s4"); A("    s_mov_b32 s41, s5"); A("    s_mov_b32 s42, 16384"); A("    s_mov_b32 s43, 0x20000")
    A("    buffer_load_dwordx4 v[84:87], v14, s[40:43], s31 offen")
    A("    buffer_load_dwordx4 v[88:91], v15, s[40:43], s31 offen")
    A("    s_mov_b32 s32, s6"); A("    s_mov_b32 s33, s7"); A(f"    s_mov_b32 s34, {KV_BYTES}"); A("    s_mov_b32 s35, 0x20000")
    A("    s_mov_b32 s36, s8"); A("    s_mov_b32 s37, s9"); A(f"    s_mov_b32 s38, {KV_BYTES}"); A("    s_mov_b32 s39, 0x20000")
    A("    s_mov_b32 s44, s18"); A("    s_mov_b32 s45, s19"); A(f"    s_mov_b32 s46, {1<<22}"); A("    s_mov_b32 s47, 0x20000")
    A("    s_mov_b32 s48, s14"); A("    s_mov_b32 s49, s15"); A("    s_mov_b32 s50, 16384"); A("    s_mov_b32 s51, 0x20000")
    A("    s_mov_b32 s52, s16"); A("    s_mov_b32 s53, s17"); A("    s_mov_b32 s54, 256"); A("    s_mov_b32 s55, 0x20000")
    A("    v_mov_b32 v16, 0")
    A("    v_mov_b32 v17, 0")
    A("    v_mov_b32 v18, 0")
    A("    v_mov_b32 v19, 0")
    A(f"    ds_write_b128 v16, v[16:19] offset:{LDS_FLAG}")
    A("    s_cmp_eq_u32 s21, 0")
    A("    s_waitcnt lgkmcnt(0)")
    A("    s_barrier")
    A("    s_cselect_b32 s29, s66, s67")
    A("    s_cmp_lt_i32 s29, 1")
    A("    s_cselect_b32 s68, 1, 0")
    A("    s_cselect_b32 s29, 8192, s29")
    A("    s_min_i32 s29, s29, 8192")
    A("    s_lshl_b32 s30, s25, 4")
    A("    s_sub_i32 s60, s29, s30")
    for j in range(1, 4):
        A(f"    s_sub_i32 s{60+j}, s60, {j*2048}")
    for j in range(4):
        A(f"    s_lshl_b32 s{56+j}, s{56+j}, 16")
        A(f"    s_cmp_gt_i32 s{60+j}, 0")
        A(f"    s_cselect_b32 s{56+j}, s{56+j}, 0x7f000000")

    SLOT = 96
    st(0)

    def issue(srd, j):
        for i in range(8):
            r = SLOT + 32 * j + 4 * i
            if i == 0:
                so = f"s{56+j}"
            else:
                A(f"    s_add_u32 s30, s{56+j}, {i*8192}")
                so = "s30"
            A(f"    buffer_load_dwordx4 v[{r}:{r+3}], v1, {srd}, {so} offen{fl}")

    A("    s_mov_b32 s64, 0x05040100")
    A("    s_mov_b32 s65, 0x07060302")
    A(f"    s_mov_b32 s69, {f32bits(128 ** -0.5 * math.log2(math.e)):#x}")
    for j in range(4):
        issue("s[32:35]", j)
    A("    v_bfe_u32 v8, v0, 2, 2")
    A("    v_lshl_add_u32 v10, v8, 1, v2")
    A("    v_add_u32 v9, 8, v10")
    A("    v_mov_b32 v13, 0xff800000")
    A("    v_bfe_u32 v11, v0, 1, 1")
    A("    v_cmp_eq_u32 vcc, v11, v4")
    A("    v_and_b32 v12, 1, v8")
    A("    v_lshlrev_b32 v12, 4, v12")
    A("    v_mov_b32 v11, 0xffff")
    A("    v_lshlrev_b32 v12, v12, v11")
    A("    v_cndmask_b32 v12, 0, v12, vcc")
    A("    v_cmp_gt_u32 vcc, 2, v8")
    nop(2)
    A("    v_cndmask_b32 v11, 0, v12, vcc")
    A("    v_cndmask_b32 v12, v12, 0, vcc")
    for r in range(32, 64):
        A(f"    v_mov_b32 v{r}, 0")
    for r in range(24, 32):
        A(f"    v_mov_b32 v{r}, v13")
    A("    v_mov_b32 v92, 0")
    A("    s_lshl_b32 s30, s21, 2")
    A("    v_add_u32 v93, s30, v6")
    A("    s_lshl_b32 s30, s20, 2")
    A("    v_lshlrev_b32 v94, 4, v93")
    A("    v_add_u32 v94, s30, v94")
    A("    s_lshl_b32 s30, s20, 3")
    A("    v_lshlrev_b32 v93, 5, v93")
    A("    v_lshl_add_u32 v93, v2, 2, v93")
    A("    v_add_u32 v93, s30, v93")
    A("    s_cmp_eq_u32 s68, 0")
    A("    s_cbranch_scc1 L_qok")
    A("    s_waitcnt vmcnt(32)")
    for r in range(84, 92):
        A(f"    v_mov_b32 v{r}, 0")
    A("L_qok:")

    X = 16
    for j in range(4):
        R = SLOT + 32 * j
        if skip:
            A(f"    s_cmp_le_i32 s{60+j}, 0")
            A(f"    s_cbranch_scc1 L_kskip{j}")
        for g in range(2):
            A(f"    s_waitcnt vmcnt({28 - 4*g})")
            if j == 0 and g == 0:
                st(1)
            for w in range(4):
                for i in range(4 * g, 4 * g + 4):
                    if w == 0:
                        A(f"    v_dot2_f32_bf16 v{X+i}, v{R+4*i+w}, v{84+w}, 0")
                    else:
                        A(f"    v_dot2c_f32_bf16 v{X+i}, v{R+4*i+w}, v{84+w}")
            for w in range(4):
                for i in range(4 * g, 4 * g + 4):
                    A(f"    v_dot2c_f32_bf16_dpp v{X+i}, v{R+4*i+w}, v{88+w} quad_perm:[1,0,3,2] row_mask:0xf bank_mask:0xf")
        for g in range(2):
            x = X + 4 * g
            y0, y1 = 64 + 2 * g, 65 + 2 * g
            A(f"    v_add_f32_dpp v{y0}, v{x+0}, v{x+0} row_ror:8 row_mask:0xf bank_mask:0x3")
            A(f"    v_add_f32_dpp v{y0}, v{x+2}, v{x+2} row_ror:8 row_mask:0xf bank_mask:0xc")
            A(f"    v_add_f32_dpp v{y1}, v{x+1}, v{x+1} row_ror:8 row_mask:0xf bank_mask:0x3")
            A(f"    v_add_f32_dpp v{y1}, v{x+3}, v{x+3} row_ror:8 row_mask:0xf bank_mask:0xc")
        for g in range(2):
            y0, y1 = 64 + 2 * g, 65 + 2 * g
            z = 68 + g
            A(f"    v_add_f32_dpp v{z}, v{y0}, v{y0} row_shl:4 row_mask:0xf bank_mask:0x5")
            A(f"    v_add_f32_dpp v{z}, v{y1}, v{y1} row_shr:4 row_mask:0xf bank_mask:0xa")
        A(f"    v_cmp_gt_i32 vcc, s{60+j}, v10")
        A(f"    v_cmp_gt_i32 s[70:71], s{60+j}, v9")
        A("    v_add_f32_dpp v68, v68, v68 quad_perm:[2,3,0,1] row_mask:0xf bank_mask:0xf")
        A("    v_add_f32_dpp v69, v69, v69 quad_perm:[2,3,0,1] row_mask:0xf bank_mask:0xf")
        A(f"    v_cndmask_b32 v{24+2*j}, v13, v68, vcc")
        A(f"    v_cndmask_b32 v{25+2*j}, v13, v69, s[70:71]")
        if skip:
            A(f"L_kskip{j}:")
            A("    s_waitcnt vmcnt(24)")
        issue("s[36:39]", j)
    st(2)
    A("    v_max3_f32 v64, v24, v25, v26")
    A("    v_max3_f32 v65, v27, v28, v29")
    A("    v_max3_f32 v64, v64, v30, v31")
    A("    v_mov_b32 v66, 0xf149f2ca")
    A("    v_max3_f32 v64, v64, v65, v66")
    nop(2)
    A("    v_max_f32_dpp v64, v64, v64 row_ror:4 row_mask:0xf bank_mask:0xf")
    nop(2)
    A("    v_max_f32_dpp v64, v64, v64 row_ror:8 row_mask:0xf bank_mask:0xf")
    A("    v_mov_b32 v65, v64")
    nop(2)
    A("    v_permlane32_swap_b32 v64, v65")
    A("    v_max_f32 v64, v64, v65")
    A("    v_mul_f32 v95, s69, v64")
    A(f"    ds_write_b32 v94, v95 offset:{LDS_MX}")
    PB = 224
    for k in range(8):
        A(f"    v_fma_f32 v{24+k}, v{24+k}, s69, -v95")
    for k in range(8):
        A(f"    v_exp_f32 v{24+k}, v{24+k}")
    for k in range(8):
        A(f"    v_cvt_pk_bf16_f32 v{24+k}, v{24+k}, v{24+k}")
    for k in range(8):
        A(f"    v_and_b32 v{PB+2*k}, v{24+k}, v11")
        A(f"    v_and_b32 v{PB+2*k+1}, v{24+k}, v12")
        A(f"    v_and_b32 v{24+k}, 0xffff0000, v{24+k}")
    for k in range(8):
        A(f"    v_add_f32 v92, v92, v{24+k}")
    nop(2)
    A("    v_add_f32_dpp v92, v92, v92 row_ror:4 row_mask:0xf bank_mask:0xf")
    nop(2)
    A("    v_add_f32_dpp v92, v92, v92 row_ror:8 row_mask:0xf bank_mask:0xf")
    A(f"    ds_write_b32 v93, v92 offset:{LDS_LS}")
    st(3)
    A(f"    s_mul_i32 s30, s3, {16*RS}")
    A(f"    v_mul_u32_u24 v16, {RS}, v7")
    A("    v_lshrrev_b32 v17, 4, v0")
    A("    v_lshl_add_u32 v16, v17, 7, v16")
    A("    v_add_u32 v16, s30, v16")
    A(f"    v_mul_u32_u24 v17, {32*RS}, v2")
    A("    v_lshl_add_u32 v17, v3, 4, v17")
    A("    s_lshl_b32 s30, s21, 6")
    A("    s_add_u32 s30, s30, s20")
    A(f"    s_mul_i32 s30, s30, {RS}")
    A("    v_add_u32 v17, s30, v17")
    A("    s_lshl_b32 s30, s3, 4")
    A("    v_mov_b32 v18, s30")
    A("    s_lshl_b32 s30, s3, 5")
    A("    v_mov_b32 v19, s30")
    A("    s_lshl_b32 s30, s28, 5")
    A("    s_add_u32 s30, s30, s23")
    A("    s_lshl_b32 s30, s30, 2")
    A("    s_add_u32 s30, s30, s20")
    A("    s_lshl_b32 s72, s30, 9")
    A("    s_lshl_b32 s73, s28, 2")
    A("    s_add_u32 s73, s73, s20")
    A("    s_lshl_b32 s76, s73, 8")
    A("    s_lshl_b32 s73, s73, 8")
    A(f"    s_add_u32 s73, s73, {WS_ML}")
    A("    s_and_b32 s30, s23, 1")
    A("    s_lshl_b32 s30, s30, 7")
    A("    s_lshr_b32 s74, s23, 1")
    A("    s_lshl_b32 s74, s74, 3")
    A("    s_add_u32 s74, s74, s30")
    A("    s_add_u32 s74, s74, s73")
    A("    v_lshlrev_b32 v20, 4, v3")
    A("    v_mov_b32 v21, 0")
    A("    v_lshlrev_b32 v22, 7, v2")
    A("    v_lshl_add_u32 v23, v2, 11, v20")
    A("    v_lshrrev_b32 v84, 3, v3")
    A("    v_and_b32 v85, 7, v3")
    A("    v_lshl_add_u32 v84, v84, 5, v85")
    A("    v_lshlrev_b32 v84, 1, v84")
    A("    s_lshl_b32 s77, s28, 7")
    A("    s_add_u32 s77, s77, s20")
    A("    s_lshl_b32 s77, s77, 9")
    for j in range(4):
        R = SLOT + 32 * j
        if skip:
            A(f"    s_cmp_le_i32 s{60+j}, 0")
            A(f"    s_cbranch_scc1 L_vdone")
        A(f"    s_waitcnt vmcnt({8*(3-j)})")
        for e in range(8):
            T = 64 + 4 * (e % 4)
            sel = "s64" if e % 2 == 0 else "s65"
            for p in range(4):
                A(f"    v_perm_b32 v{T+p}, v{R+4*(2*p+1)+(e>>1)}, v{R+4*(2*p)+(e>>1)}, {sel}")
            if e >= 1:
                ep = e - 1
                Tp = 64 + 4 * (ep % 4)
                A(f"    v_mfma_f32_16x16x32_bf16 v[{32+4*ep}:{35+4*ep}], v[{Tp}:{Tp+3}], v[{PB+4*j}:{PB+4*j+3}], v[{32+4*ep}:{35+4*ep}]")
        nop(1)
        A(f"    v_mfma_f32_16x16x32_bf16 v[60:63], v[76:79], v[{PB+4*j}:{PB+4*j+3}], v[60:63]")
    A("L_vdone:")
    A("    s_waitcnt vmcnt(0)")
    st(4)
    for e in range(8):
        if e == 6:
            nop(3)
        A(f"    ds_write_b128 v16, v[{32+4*e}:{35+4*e}] offset:{LDS_O+16*e}")
    A("    s_waitcnt lgkmcnt(0)")
    A("    s_mov_b32 s78, 1")
    A("    s_cmp_lg_u32 s21, 0")
    A("    s_cbranch_scc1 L_b1bar")
    A("    v_mov_b32 v70, 1")
    A("    s_mov_b64 exec, 1")
    A(f"    ds_add_rtn_u32 v70, v21, v70 offset:{LDS_FLAG}")
    A("    s_waitcnt lgkmcnt(0)")
    A("    v_readfirstlane_b32 s30, v70")
    A("    s_mov_b64 exec, -1")
    A("    s_cmp_lg_u32 s30, 3")
    A("    s_cbranch_scc1 L_bar1")
    A(f"    s_mul_i32 s30, s20, {RS}")
    A("    v_subrev_u32 v17, s30, v17")
    A("    s_lshl_b32 s30, s20, 4")
    A("    v_subrev_u32 v18, s30, v18")
    A("    s_lshl_b32 s30, s20, 5")
    A("    v_subrev_u32 v19, s30, v19")
    A("    s_lshl_b32 s30, s20, 9")
    A("    s_sub_u32 s72, s72, s30")
    A("    s_lshl_b32 s30, s20, 8")
    A("    s_sub_u32 s74, s74, s30")
    A("    s_mov_b32 s78, 4")
    A("    s_branch L_merge")
    A("L_b1bar:")
    A("    s_barrier")
    A("L_merge:")
    A(f"    ds_read_b128 v[136:139], v18 offset:{LDS_MX}")
    A(f"    ds_read_b128 v[128:131], v19 offset:{LDS_LS}")
    A(f"    ds_read_b128 v[132:135], v19 offset:{LDS_LS+16}")
    for k in range(8):
        off = LDS_O + ((k >> 2) * 16 + (k & 3) * 4) * RS
        A(f"    ds_read_b128 v[{96+4*k}:{99+4*k}], v17 offset:{off}")
    A("    s_waitcnt lgkmcnt(10)")
    A("    v_max3_f32 v140, v136, v137, v138")
    A("    v_max_f32 v140, v140, v139")
    for w in range(4):
        A(f"    v_sub_f32 v{136+w}, v{136+w}, v140")
    for w in range(4):
        A(f"    v_exp_f32 v{136+w}, v{136+w}")
    A("    s_waitcnt lgkmcnt(8)")
    for w in range(4):
        A(f"    v_add_f32 v{128+2*w}, v{128+2*w}, v{129+2*w}")
    A("    v_cmp_eq_u32 vcc, 0, v2")
    A("    v_mul_f32 v141, v128, v136")
    A("    v_fmac_f32 v141, v130, v137")
    A("    v_fmac_f32 v141, v132, v138")
    A("    v_fmac_f32 v141, v134, v139")
    A("    v_cndmask_b32 v142, v138, v136, vcc")
    A("    v_cndmask_b32 v143, v139, v137, vcc")
    A("    s_waitcnt lgkmcnt(4)")
    for c in range(4):
        A(f"    v_add_f32 v{96+c}, v{96+c}, v{100+c}")
        A(f"    v_add_f32 v{104+c}, v{104+c}, v{108+c}")
    for c in range(4):
        A(f"    v_add_f32 v{96+c}, v{96+c}, v{104+c}")
    A("    s_waitcnt lgkmcnt(0)")
    for c in range(4):
        A(f"    v_add_f32 v{112+c}, v{112+c}, v{116+c}")
        A(f"    v_add_f32 v{120+c}, v{120+c}, v{124+c}")
    for c in range(4):
        A(f"    v_mul_f32 v{96+c}, v{96+c}, v142")
    for c in range(4):
        A(f"    v_add_f32 v{112+c}, v{112+c}, v{120+c}")
    for c in range(4):
        A(f"    v_fmac_f32 v{96+c}, v{112+c}, v143")
    for c in range(4):
        A(f"    v_mov_b32 v{100+c}, v{96+c}")
    nop(1)
    for c in range(4):
        A(f"    v_permlane32_swap_b32 v{96+c}, v{100+c}")
    for c in range(4):
        A(f"    v_add_f32 v{144+c}, v{96+c}, v{100+c}")
    st(5)
    A("    s_mov_b32 exec_hi, 0")
    A("    buffer_store_dwordx4 v[144:147], v20, s[44:47], s72 offen sc1")
    A("    s_mov_b64 exec, 1")
    A("    buffer_store_dwordx2 v[140:141], v21, s[44:47], s74 offen sc1")
    A("    s_mov_b64 exec, -1")
    A("    s_sub_u32 s78, s78, 1")
    A("    s_cmp_eq_u32 s78, 0")
    A("    s_cbranch_scc1 L_mdone")
    A(f"    v_add_u32 v17, {RS}, v17")
    A("    v_add_u32 v18, 16, v18")
    A("    v_add_u32 v19, 32, v19")
    A("    s_add_u32 s72, s72, 512")
    A("    s_add_u32 s74, s74, 256")
    A("    s_branch L_merge")
    A("L_mdone:")
    A("    s_lshl_b32 s79, s75, 5")
    A("    s_waitcnt vmcnt(0)")
    st(6)
    A("    s_cmp_lg_u32 s21, 0")
    A("    s_cbranch_scc1 L_b1pub")
    A("    v_mov_b32 v70, 1")
    A("    s_mov_b64 exec, 1")
    A("    buffer_atomic_add v70, v21, s[52:55], s79 offen sc0")
    A("    s_mov_b64 exec, -1")
    A("    s_waitcnt vmcnt(0)")
    A("L_bar1:")
    A("    s_barrier")
    A("L_spin0:")
    A("    s_sleep 1")
    A(f"    ds_read_b32 v70, v21 offset:{LDS_FLAG+12}")
    A("    s_waitcnt lgkmcnt(0)")
    A("    v_readfirstlane_b32 s30, v70")
    A("    s_cmp_eq_u32 s30, 0")
    A("    s_cbranch_scc1 L_spin0")
    st(7)
    if stamp:
        A("    s_mov_b32 s92, 0")
    A("    s_cmp_eq_u32 s30, 1")
    A("    s_cbranch_scc1 L_fin")
    A("    s_branch L_final")
    A("L_b1pub:")
    A("    v_mov_b32 v70, 1")
    A("    s_mov_b64 exec, 1")
    A(f"    ds_add_rtn_u32 v71, v21, v70 offset:{LDS_FLAG+4}")
    A("    v_mov_b32 v70, 0x100")
    A("    s_waitcnt lgkmcnt(0)")
    A("    v_readfirstlane_b32 s30, v71")
    A("    s_cmp_lg_u32 s30, 3")
    A("    s_cbranch_scc1 L_spin")
    A("    buffer_atomic_add v70, v21, s[52:55], s79 offen sc0")
    A("    s_waitcnt vmcnt(0)")
    A("    v_readfirstlane_b32 s30, v70")
    A("    s_bfe_u32 s31, s30, 0x80008")
    A("    s_cmp_eq_u32 s31, 31")
    A("    s_cselect_b32 s31, 2, 1")
    A("    v_mov_b32 v70, s31")
    A(f"    ds_write_b32 v21, v70 offset:{LDS_FLAG+8}")
    A("    s_and_b32 s30, s30, 0xffff00ff")
    A("    s_mov_b32 s31, 1")
    A("    s_cmp_lg_u32 s30, 32")
    A("    s_cbranch_scc1 L_noclaim")
    A("    v_mov_b32 v70, 0x10000")
    A("    buffer_atomic_add v70, v21, s[52:55], s79 offen sc0")
    A("    s_waitcnt vmcnt(0)")
    A("    v_readfirstlane_b32 s30, v70")
    A("    s_lshr_b32 s30, s30, 16")
    A("    s_cmp_eq_u32 s30, 0")
    A("    s_cselect_b32 s31, 2, 1")
    A("L_noclaim:")
    A("    v_mov_b32 v70, s31")
    A(f"    ds_write_b32 v21, v70 offset:{LDS_FLAG+12}")
    A("L_spin:")
    A(f"    ds_read_b32 v70, v21 offset:{LDS_FLAG+8}")
    A("    s_waitcnt lgkmcnt(0)")
    A("    v_readfirstlane_b32 s30, v70")
    A("    s_cmp_eq_u32 s30, 0")
    A("    s_cbranch_scc1 L_spin")
    A("    s_mov_b64 exec, -1")
    st(7)
    if stamp:
        A("    s_mov_b32 s92, 0")
    A("    s_cmp_lg_u32 s30, 2")
    A("    s_cbranch_scc1 L_fin")
    A("L_final:")
    for k in range(8):
        A(f"    buffer_load_dwordx4 v[{160+4*k}:{163+4*k}], v22, s[44:47], s73 offen offset:{16*k} sc1")
    for k in range(16):
        A(f"    buffer_load_dwordx4 v[{96+4*k}:{99+4*k}], v23, s[44:47], s77 offen sc1")
        if k < 15:
            A("    s_add_u32 s77, s77, 4096")
    A("    s_waitcnt vmcnt(16)")
    st(8)
    A("    v_max3_f32 v64, v160, v162, v164")
    A("    v_max3_f32 v65, v166, v168, v170")
    A("    v_max3_f32 v66, v172, v174, v176")
    A("    v_max3_f32 v67, v178, v180, v182")
    A("    v_max3_f32 v64, v64, v184, v186")
    A("    v_max3_f32 v65, v65, v188, v190")
    A("    v_max3_f32 v64, v64, v65, v66")
    A("    v_max_f32 v64, v64, v67")
    A("    v_mov_b32 v65, v64")
    nop(2)
    A("    v_permlane32_swap_b32 v64, v65")
    A("    v_max_f32 v64, v64, v65")
    for k in range(16):
        A(f"    v_sub_f32 v{160+2*k}, v{160+2*k}, v64")
    for k in range(16):
        A(f"    v_exp_f32 v{160+2*k}, v{160+2*k}")
    A("    v_mul_f32 v72, v160, v161")
    for k in range(1, 16):
        A(f"    v_fmac_f32 v72, v{160+2*k}, v{161+2*k}")
    A("    v_mov_b32 v73, v72")
    nop(2)
    A("    v_permlane32_swap_b32 v72, v73")
    A("    v_add_f32 v72, v72, v73")
    A("    v_rcp_f32 v72, v72")
    for k in range(16):
        A(f"    s_waitcnt vmcnt({15-k})")
        for c in range(4):
            if k == 0:
                A(f"    v_mul_f32 v{64+c}, v160, v{96+c}")
            else:
                A(f"    v_fmac_f32 v{64+c}, v{160+2*k}, v{96+4*k+c}")
    for c in range(4):
        A(f"    v_mov_b32 v{76+c}, v{64+c}")
    nop(1)
    for c in range(4):
        A(f"    v_permlane32_swap_b32 v{64+c}, v{76+c}")
    for c in range(4):
        A(f"    v_add_f32 v{64+c}, v{64+c}, v{76+c}")
    for c in range(4):
        A(f"    v_mul_f32 v{64+c}, v{64+c}, v72")
    A("    v_cvt_pk_bf16_f32 v64, v64, v65")
    A("    v_cvt_pk_bf16_f32 v66, v66, v67")
    A("    s_mov_b32 exec_hi, 0")
    A("    buffer_store_short v64, v84, s[48:51], s76 offen")
    A("    buffer_store_short_d16_hi v64, v84, s[48:51], s76 offen offset:16")
    A("    buffer_store_short v66, v84, s[48:51], s76 offen offset:32")
    A("    buffer_store_short_d16_hi v66, v84, s[48:51], s76 offen offset:48")
    A("    s_mov_b64 exec, -1")
    A("L_fin:")
    if pad:
        A("L_pad:")
        A("    s_sleep 4")
        A("    s_memrealtime s[82:83]")
        A("    s_waitcnt lgkmcnt(0)")
        A("    s_sub_u32 s82, s82, s80")
        A(f"    s_cmp_lt_u32 s82, {pad}")
        A("    s_cbranch_scc1 L_pad")
    if stamp:
        A("    s_waitcnt vmcnt(0)")
        A("    s_memrealtime s[82:83]")
        A("    s_add_u32 s56, s18, 0x8000000")
        A("    s_addc_u32 s57, s19, 0")
        A("    s_mov_b32 s58, 0x100000")
        A("    s_mov_b32 s59, 0x20000")
        A("    s_lshl_b32 s30, s2, 3")
        A("    s_add_u32 s30, s30, s3")
        A("    s_lshl_b32 s31, s30, 6")
        A("    s_add_u32 s31, s31, 0x10000")
        A("    s_lshl_b32 s30, s30, 4")
        A("    s_waitcnt lgkmcnt(0)")
        A("    v_mov_b32 v8, s80"); A("    v_mov_b32 v9, s81"); A("    v_mov_b32 v10, s82"); A("    v_mov_b32 v11, s83")
        for k in range(12):
            A(f"    v_mov_b32 v{24+k}, s{84+k}")
        A("    s_mov_b64 exec, 1")
        A("    buffer_store_dwordx4 v[8:11], v21, s[56:59], s30 offen")
        A("    buffer_store_dwordx4 v[24:27], v21, s[56:59], s31 offen")
        A("    buffer_store_dwordx4 v[28:31], v21, s[56:59], s31 offen offset:16")
        A("    buffer_store_dwordx4 v[32:35], v21, s[56:59], s31 offen offset:32")
    A("L_end:")
    A("    s_endpgm")
    A('.section .rodata,"a"')
    A(".p2align 6")
    A(f".amdhsa_kernel {NAME}_kernel")
    A("  .amdhsa_next_free_vgpr 240")
    A("  .amdhsa_next_free_sgpr 100")
    A("  .amdhsa_accum_offset 240")
    A("  .amdhsa_group_segment_fixed_size 0")
    A("  .amdhsa_kernarg_size 64")
    A("  .amdhsa_user_sgpr_count 2")
    A("  .amdhsa_user_sgpr_kernarg_segment_ptr 1")
    A("  .amdhsa_system_sgpr_workgroup_id_x 1")
    A(".end_amdhsa_kernel")
    return "\n".join(L) + "\n"


if __name__ == "__main__":
    open("v4.s", "w").write(gen())
    open("v4_st.s", "w").write(gen(stamp=True))
```

```python
import sys, math, struct
NAME = "standalone__paged_block_table_kv_pagedattention__decode"
HDR = open("cdna_kernels/" + NAME + ".s.ref").read().split("; Override launch")[0]

KV_BYTES = 1028 * 65536
RS = 528
LDS_MX = 0
LDS_LS = 128
LDS_FLAG = 384
LDS_O = 512
LDS_BYTES = LDS_O + 128 * RS
WS_ML = 1 << 21


def f32bits(x):
    return struct.unpack("<I", struct.pack("<f", x))[0]


def gen(stamp=False, pad=0, flags="nt", nslot=5):
    L = []
    A = L.append
    fl = " " + flags
    vmq = []

    def vm(tag):
        vmq.append(tag)

    def vwait(tag):
        idx = max(i for i, t in enumerate(vmq) if t == tag)
        n = len(vmq) - 1 - idx
        assert n <= 63
        A(f"    s_waitcnt vmcnt({n})")

    def st(k):
        if stamp:
            A("    s_memrealtime s[82:83]")
            A("    s_waitcnt lgkmcnt(0)")
            A(f"    s_mov_b32 s{84+k}, s82")

    def nop(n):
        if n > 0:
            A(f"    s_nop {n-1}")

    A(HDR.rstrip())
    A(f"; @launch grid=(256,1,1) block=(512,1,1) lds={LDS_BYTES}")
    A('.amdgcn_target "amdgcn-amd-amdhsa--gfx950"')
    A(".text")
    A(f".globl {NAME}_kernel")
    A(".p2align 8")
    A(f".type {NAME}_kernel,@function")
    A(f"{NAME}_kernel:")
    A("    s_cmp_ge_u32 s2, 256")
    A("    s_cbranch_scc1 L_end")
    A("    s_load_dwordx16 s[4:19], s[0:1], 0")
    if stamp or pad:
        A("    s_memrealtime s[80:81]")
    A("    v_lshrrev_b32 v1, 6, v0")
    A("    v_and_b32 v0, 63, v0")
    A("    v_readfirstlane_b32 s3, v1")
    A("    s_lshr_b32 s22, s2, 3")
    A("    s_and_b32 s75, s22, 7")
    A("    s_lshr_b32 s23, s2, 6")
    A("    s_lshl_b32 s23, s23, 3")
    A("    s_and_b32 s24, s2, 7")
    A("    s_or_b32 s23, s23, s24")
    A("    s_lshr_b32 s21, s3, 2")
    A("    s_and_b32 s20, s3, 3")
    A("    s_xor_b32 s22, s75, s21")
    A("    s_mul_i32 s24, s21, 31")
    A("    s_xor_b32 s23, s23, s24")
    A("    s_lshl_b32 s25, s20, 5")
    A("    s_add_u32 s25, s25, s23")
    A("    s_lshl_b32 s27, s21, 9")
    A("    s_add_u32 s27, s27, s25")
    A("    s_lshl_b32 s27, s27, 2")
    A("    v_lshrrev_b32 v2, 5, v0")
    A("    v_and_b32 v3, 31, v0")
    A("    v_lshlrev_b32 v1, 12, v2")
    A("    v_lshl_add_u32 v1, v3, 4, v1")
    A("    s_lshl_b32 s26, s22, 9")
    A("    v_add_u32 v1, s26, v1")
    A("    v_bfe_u32 v4, v0, 4, 1")
    A("    v_and_b32 v5, 1, v0")
    A("    v_lshl_add_u32 v6, v4, 1, v5")
    A("    v_and_b32 v7, 15, v0")
    A("    v_lshlrev_b32 v8, 8, v6")
    A("    v_lshl_add_u32 v14, v7, 4, v8")
    A("    v_xor_b32 v15, 16, v14")
    A("    s_lshl_b32 s28, s21, 3")
    A("    s_add_u32 s28, s28, s22")
    A("    s_lshl_b32 s31, s28, 10")
    A("    s_waitcnt lgkmcnt(0)")
    A("    s_add_u32 s10, s10, s27")
    A("    s_addc_u32 s11, s11, 0")
    for j in range(4):
        A(f"    s_load_dword s{56+j}, s[10:11], {j*512}")
    A("    s_load_dwordx2 s[66:67], s[12:13], 0")
    Q = 80
    A("    s_mov_b32 s40, s4"); A("    s_mov_b32 s41, s5"); A("    s_mov_b32 s42, 16384"); A("    s_mov_b32 s43, 0x20000")
    A(f"    buffer_load_dwordx4 v[{Q}:{Q+3}], v14, s[40:43], s31 offen"); vm("Q")
    A(f"    buffer_load_dwordx4 v[{Q+4}:{Q+7}], v15, s[40:43], s31 offen"); vm("Q")
    A("    s_mov_b32 s32, s6"); A("    s_mov_b32 s33, s7"); A(f"    s_mov_b32 s34, {KV_BYTES}"); A("    s_mov_b32 s35, 0x20000")
    A("    s_mov_b32 s36, s8"); A("    s_mov_b32 s37, s9"); A(f"    s_mov_b32 s38, {KV_BYTES}"); A("    s_mov_b32 s39, 0x20000")
    A("    s_mov_b32 s44, s18"); A("    s_mov_b32 s45, s19"); A(f"    s_mov_b32 s46, {1<<22}"); A("    s_mov_b32 s47, 0x20000")
    A("    s_mov_b32 s48, s14"); A("    s_mov_b32 s49, s15"); A("    s_mov_b32 s50, 16384"); A("    s_mov_b32 s51, 0x20000")
    A("    s_mov_b32 s52, s16"); A("    s_mov_b32 s53, s17"); A("    s_mov_b32 s54, 256"); A("    s_mov_b32 s55, 0x20000")
    A("    s_mov_b32 s64, 0x05040100")
    A("    s_mov_b32 s65, 0x07060302")
    A(f"    s_mov_b32 s69, {f32bits(128 ** -0.5 * math.log2(math.e)):#x}")
    for r in range(16, 20):
        A(f"    v_mov_b32 v{r}, 0")
    A(f"    ds_write_b128 v16, v[16:19] offset:{LDS_FLAG}")
    A("    v_bfe_u32 v8, v0, 2, 2")
    A("    v_lshl_add_u32 v10, v8, 1, v2")
    A("    v_add_u32 v9, 8, v10")
    A("    v_mov_b32 v13, 0xff800000")
    A("    v_bfe_u32 v11, v0, 1, 1")
    A("    v_cmp_eq_u32 vcc, v11, v4")
    A("    v_and_b32 v12, 1, v8")
    A("    v_lshlrev_b32 v12, 4, v12")
    A("    v_mov_b32 v11, 0xffff")
    A("    v_lshlrev_b32 v12, v12, v11")
    A("    v_cndmask_b32 v12, 0, v12, vcc")
    A("    v_cmp_gt_u32 vcc, 2, v8")
    for r in range(32, 64):
        A(f"    v_mov_b32 v{r}, 0")
    A("    v_cndmask_b32 v11, 0, v12, vcc")
    A("    v_cndmask_b32 v12, v12, 0, vcc")
    for r in range(24, 32):
        A(f"    v_mov_b32 v{r}, v13")
    A("    v_mov_b32 v92, 0")
    A("    s_lshl_b32 s30, s21, 2")
    A("    v_add_u32 v93, s30, v6")
    A("    s_lshl_b32 s30, s20, 2")
    A("    v_lshlrev_b32 v94, 4, v93")
    A("    v_add_u32 v94, s30, v94")
    A("    s_lshl_b32 s30, s20, 3")
    A("    v_lshlrev_b32 v93, 5, v93")
    A("    v_lshl_add_u32 v93, v2, 2, v93")
    A("    v_add_u32 v93, s30, v93")
    A("    s_cmp_eq_u32 s21, 0")
    A("    s_waitcnt lgkmcnt(0)")
    A("    s_barrier")
    A("    s_cselect_b32 s29, s66, s67")
    A("    s_cmp_lt_i32 s29, 1")
    A("    s_cselect_b32 s68, 1, 0")
    A("    s_cselect_b32 s29, 8192, s29")
    A("    s_min_i32 s29, s29, 8192")
    A("    s_lshl_b32 s30, s25, 4")
    A("    s_sub_i32 s60, s29, s30")
    for j in range(1, 4):
        A(f"    s_sub_i32 s{60+j}, s60, {j*2048}")
    for j in range(4):
        A(f"    s_lshl_b32 s{56+j}, s{56+j}, 16")
        A(f"    s_cmp_gt_i32 s{60+j}, 0")
        A(f"    s_cselect_b32 s{56+j}, s{56+j}, 0x7f000000")

    SLOT = 96
    st(0)
    kslot = [0, 1, 2, 3]
    vslot = [4, 0, 1, 2] if nslot == 5 else [0, 1, 2, 3]

    def issue(kind, j):
        srd = "s[32:35]" if kind == "K" else "s[36:39]"
        sl = kslot[j] if kind == "K" else vslot[j]
        for i in range(8):
            r = SLOT + 32 * sl + 4 * i
            if i == 0:
                so = f"s{56+j}"
            else:
                A(f"    s_add_u32 s30, s{56+j}, {i*8192}")
                so = "s30"
            A(f"    buffer_load_dwordx4 v[{r}:{r+3}], v1, {srd}, {so} offen{fl}")
            vm(f"{kind}{j}_{i>>2}")

    for j in range(4):
        issue("K", j)
    if nslot == 5:
        issue("V", 0)
    A("    s_cmp_eq_u32 s68, 0")
    A("    s_cbranch_scc1 L_qok")
    vwait("Q")
    for r in range(Q, Q + 8):
        A(f"    v_mov_b32 v{r}, 0")
    A("L_qok:")

    X = 16
    for j in range(4):
        R = SLOT + 32 * kslot[j]
        A(f"    s_cmp_le_i32 s{60+j}, 0")
        A(f"    s_cbranch_scc1 L_kskip{j}")
        for g in range(2):
            vwait(f"K{j}_{g}")
            if j == 0 and g == 0:
                st(1)
            for w in range(4):
                for i in range(4 * g, 4 * g + 4):
                    if w == 0:
                        A(f"    v_dot2_f32_bf16 v{X+i}, v{R+4*i+w}, v{Q+w}, 0")
                    else:
                        A(f"    v_dot2c_f32_bf16 v{X+i}, v{R+4*i+w}, v{Q+w}")
            for w in range(4):
                for i in range(4 * g, 4 * g + 4):
                    A(f"    v_dot2c_f32_bf16_dpp v{X+i}, v{R+4*i+w}, v{Q+4+w} quad_perm:[1,0,3,2] row_mask:0xf bank_mask:0xf")
        for g in range(2):
            x = X + 4 * g
            y0, y1 = 64 + 2 * g, 65 + 2 * g
            A(f"    v_add_f32_dpp v{y0}, v{x+0}, v{x+0} row_ror:8 row_mask:0xf bank_mask:0x3")
            A(f"    v_add_f32_dpp v{y0}, v{x+2}, v{x+2} row_ror:8 row_mask:0xf bank_mask:0xc")
            A(f"    v_add_f32_dpp v{y1}, v{x+1}, v{x+1} row_ror:8 row_mask:0xf bank_mask:0x3")
            A(f"    v_add_f32_dpp v{y1}, v{x+3}, v{x+3} row_ror:8 row_mask:0xf bank_mask:0xc")
        for g in range(2):
            y0, y1 = 64 + 2 * g, 65 + 2 * g
            z = 68 + g
            A(f"    v_add_f32_dpp v{z}, v{y0}, v{y0} row_shl:4 row_mask:0xf bank_mask:0x5")
            A(f"    v_add_f32_dpp v{z}, v{y1}, v{y1} row_shr:4 row_mask:0xf bank_mask:0xa")
        A(f"    v_cmp_gt_i32 vcc, s{60+j}, v10")
        A(f"    v_cmp_gt_i32 s[70:71], s{60+j}, v9")
        A("    v_add_f32_dpp v68, v68, v68 quad_perm:[2,3,0,1] row_mask:0xf bank_mask:0xf")
        A("    v_add_f32_dpp v69, v69, v69 quad_perm:[2,3,0,1] row_mask:0xf bank_mask:0xf")
        A(f"    v_cndmask_b32 v{24+2*j}, v13, v68, vcc")
        A(f"    v_cndmask_b32 v{25+2*j}, v13, v69, s[70:71]")
        A(f"L_kskip{j}:")
        vwait(f"K{j}_1")
        if nslot == 5:
            if j < 3:
                issue("V", j + 1)
        else:
            issue("V", j)
    st(2)
    A("    v_max3_f32 v64, v24, v25, v26")
    A("    v_max3_f32 v65, v27, v28, v29")
    A("    v_max3_f32 v64, v64, v30, v31")
    A("    v_mov_b32 v66, 0xf149f2ca")
    A("    v_max3_f32 v64, v64, v65, v66")
    nop(2)
    A("    v_max_f32_dpp v64, v64, v64 row_ror:4 row_mask:0xf bank_mask:0xf")
    nop(2)
    A("    v_max_f32_dpp v64, v64, v64 row_ror:8 row_mask:0xf bank_mask:0xf")
    A("    v_mov_b32 v65, v64")
    nop(2)
    A("    v_permlane32_swap_b32 v64, v65")
    A("    v_max_f32 v64, v64, v65")
    A("    v_mul_f32 v95, s69, v64")
    A(f"    ds_write_b32 v94, v95 offset:{LDS_MX}")
    PB = [16, 20, 80, 84]
    for k in range(8):
        A(f"    v_fma_f32 v{24+k}, v{24+k}, s69, -v95")
    for k in range(8):
        A(f"    v_exp_f32 v{24+k}, v{24+k}")
    for k in range(8):
        A(f"    v_cvt_pk_bf16_f32 v{24+k}, v{24+k}, v{24+k}")
    for k in range(8):
        pb = PB[k >> 1] + 2 * (k & 1)
        A(f"    v_and_b32 v{pb}, v{24+k}, v11")
        A(f"    v_and_b32 v{pb+1}, v{24+k}, v12")
        A(f"    v_and_b32 v{24+k}, 0xffff0000, v{24+k}")
    for k in range(8):
        A(f"    v_add_f32 v92, v92, v{24+k}")
    nop(2)
    A("    v_add_f32_dpp v92, v92, v92 row_ror:4 row_mask:0xf bank_mask:0xf")
    nop(2)
    A("    v_add_f32_dpp v92, v92, v92 row_ror:8 row_mask:0xf bank_mask:0xf")
    A(f"    ds_write_b32 v93, v92 offset:{LDS_LS}")
    st(3)
    A(f"    s_mul_i32 s30, s3, {16*RS}")
    A(f"    v_mul_u32_u24 v24, {RS}, v7")
    A("    v_lshrrev_b32 v25, 4, v0")
    A("    v_lshl_add_u32 v24, v25, 7, v24")
    A("    v_add_u32 v24, s30, v24")
    A(f"    v_mul_u32_u24 v25, {32*RS}, v2")
    A("    v_lshl_add_u32 v25, v3, 4, v25")
    A("    s_lshl_b32 s30, s21, 6")
    A("    s_add_u32 s30, s30, s20")
    A(f"    s_mul_i32 s30, s30, {RS}")
    A("    v_add_u32 v25, s30, v25")
    A("    s_lshl_b32 s30, s3, 4")
    A("    v_mov_b32 v26, s30")
    A("    s_lshl_b32 s30, s3, 5")
    A("    v_mov_b32 v27, s30")
    A("    s_lshl_b32 s30, s28, 5")
    A("    s_add_u32 s30, s30, s23")
    A("    s_lshl_b32 s30, s30, 2")
    A("    s_add_u32 s30, s30, s20")
    A("    s_lshl_b32 s72, s30, 9")
    A("    s_lshl_b32 s73, s28, 2")
    A("    s_add_u32 s73, s73, s20")
    A("    s_lshl_b32 s76, s73, 8")
    A("    s_lshl_b32 s73, s73, 8")
    A(f"    s_add_u32 s73, s73, {WS_ML}")
    A("    s_lshl_b32 s74, s23, 3")
    A("    s_add_u32 s74, s74, s73")
    A("    v_lshlrev_b32 v28, 4, v3")
    A("    v_mov_b32 v29, 0")
    A("    v_lshlrev_b32 v30, 3, v3")
    A("    v_lshl_add_u32 v31, v2, 11, v28")
    A("    v_lshrrev_b32 v88, 3, v3")
    A("    v_and_b32 v89, 7, v3")
    A("    v_lshl_add_u32 v88, v88, 5, v89")
    A("    v_lshlrev_b32 v88, 1, v88")
    A("    v_lshlrev_b32 v89, 2, v2")
    A("    s_lshl_b32 s77, s28, 7")
    A("    s_add_u32 s77, s77, s20")
    A("    s_lshl_b32 s77, s77, 9")
    A("    s_lshl_b32 s79, s75, 5")
    for j in range(4):
        R = SLOT + 32 * vslot[j]
        A(f"    s_cmp_le_i32 s{60+j}, 0")
        A(f"    s_cbranch_scc1 L_vdone")
        vwait(f"V{j}_1")
        for e in range(8):
            T = 64 + 4 * (e % 4)
            sel = "s64" if e % 2 == 0 else "s65"
            for p in range(4):
                A(f"    v_perm_b32 v{T+p}, v{R+4*(2*p+1)+(e>>1)}, v{R+4*(2*p)+(e>>1)}, {sel}")
            if e >= 1:
                ep = e - 1
                Tp = 64 + 4 * (ep % 4)
                A(f"    v_mfma_f32_16x16x32_bf16 v[{32+4*ep}:{35+4*ep}], v[{Tp}:{Tp+3}], v[{PB[j]}:{PB[j]+3}], v[{32+4*ep}:{35+4*ep}]")
        nop(1)
        A(f"    v_mfma_f32_16x16x32_bf16 v[60:63], v[76:79], v[{PB[j]}:{PB[j]+3}], v[60:63]")
    A("L_vdone:")
    A("    s_waitcnt vmcnt(0)")
    st(4)
    for e in range(8):
        if e == 6:
            nop(3)
        A(f"    ds_write_b128 v24, v[{32+4*e}:{35+4*e}] offset:{LDS_O+16*e}")
    A("    s_waitcnt lgkmcnt(0)")
    A("    s_mov_b32 s78, 1")
    A("    s_cmp_lg_u32 s21, 0")
    A("    s_cbranch_scc1 L_b1bar")
    A("    v_mov_b32 v70, 1")
    A("    s_mov_b64 exec, 1")
    A(f"    ds_add_rtn_u32 v70, v29, v70 offset:{LDS_FLAG}")
    A("    s_waitcnt lgkmcnt(0)")
    A("    v_readfirstlane_b32 s30, v70")
    A("    s_mov_b64 exec, -1")
    A("    s_cmp_lg_u32 s30, 3")
    A("    s_cbranch_scc1 L_bar1")
    A(f"    s_mul_i32 s30, s20, {RS}")
    A("    v_subrev_u32 v25, s30, v25")
    A("    s_lshl_b32 s30, s20, 4")
    A("    v_subrev_u32 v26, s30, v26")
    A("    s_lshl_b32 s30, s20, 5")
    A("    v_subrev_u32 v27, s30, v27")
    A("    s_lshl_b32 s30, s20, 9")
    A("    s_sub_u32 s72, s72, s30")
    A("    s_lshl_b32 s30, s20, 8")
    A("    s_sub_u32 s74, s74, s30")
    A("    s_mov_b32 s78, 4")
    A("    s_branch L_merge")
    A("L_b1bar:")
    A("    s_barrier")
    A("L_merge:")
    A(f"    ds_read_b128 v[136:139], v26 offset:{LDS_MX}")
    A(f"    ds_read_b128 v[128:131], v27 offset:{LDS_LS}")
    A(f"    ds_read_b128 v[132:135], v27 offset:{LDS_LS+16}")
    for k in range(8):
        off = LDS_O + ((k >> 2) * 16 + (k & 3) * 4) * RS
        A(f"    ds_read_b128 v[{96+4*k}:{99+4*k}], v25 offset:{off}")
    A("    s_waitcnt lgkmcnt(10)")
    A("    v_max3_f32 v140, v136, v137, v138")
    A("    v_max_f32 v140, v140, v139")
    for w in range(4):
        A(f"    v_sub_f32 v{136+w}, v{136+w}, v140")
    for w in range(4):
        A(f"    v_exp_f32 v{136+w}, v{136+w}")
    A("    s_waitcnt lgkmcnt(8)")
    for w in range(4):
        A(f"    v_add_f32 v{128+2*w}, v{128+2*w}, v{129+2*w}")
    A("    v_cmp_eq_u32 vcc, 0, v2")
    A("    v_mul_f32 v141, v128, v136")
    A("    v_fmac_f32 v141, v130, v137")
    A("    v_fmac_f32 v141, v132, v138")
    A("    v_fmac_f32 v141, v134, v139")
    A("    v_cndmask_b32 v142, v138, v136, vcc")
    A("    v_cndmask_b32 v143, v139, v137, vcc")
    A("    s_waitcnt lgkmcnt(4)")
    for c in range(4):
        A(f"    v_add_f32 v{96+c}, v{96+c}, v{100+c}")
        A(f"    v_add_f32 v{104+c}, v{104+c}, v{108+c}")
    for c in range(4):
        A(f"    v_add_f32 v{96+c}, v{96+c}, v{104+c}")
    A("    s_waitcnt lgkmcnt(0)")
    for c in range(4):
        A(f"    v_add_f32 v{112+c}, v{112+c}, v{116+c}")
        A(f"    v_add_f32 v{120+c}, v{120+c}, v{124+c}")
    for c in range(4):
        A(f"    v_mul_f32 v{96+c}, v{96+c}, v142")
    for c in range(4):
        A(f"    v_add_f32 v{112+c}, v{112+c}, v{120+c}")
    for c in range(4):
        A(f"    v_fmac_f32 v{96+c}, v{112+c}, v143")
    for c in range(4):
        A(f"    v_mov_b32 v{100+c}, v{96+c}")
    nop(1)
    for c in range(4):
        A(f"    v_permlane32_swap_b32 v{96+c}, v{100+c}")
    for c in range(4):
        A(f"    v_add_f32 v{144+c}, v{96+c}, v{100+c}")
    st(5)
    A("    s_mov_b32 exec_hi, 0")
    A("    buffer_store_dwordx4 v[144:147], v28, s[44:47], s72 offen sc1")
    A("    s_mov_b64 exec, 1")
    A("    buffer_store_dwordx2 v[140:141], v29, s[44:47], s74 offen sc1")
    A("    s_mov_b64 exec, -1")
    A("    s_sub_u32 s78, s78, 1")
    A("    s_cmp_eq_u32 s78, 0")
    A("    s_cbranch_scc1 L_mdone")
    A(f"    v_add_u32 v25, {RS}, v25")
    A("    v_add_u32 v26, 16, v26")
    A("    v_add_u32 v27, 32, v27")
    A("    s_add_u32 s72, s72, 512")
    A("    s_add_u32 s74, s74, 256")
    A("    s_branch L_merge")
    A("L_mdone:")
    A("    v_mov_b32 v70, 1")
    A("    s_cmp_lg_u32 s21, 0")
    A("    s_waitcnt vmcnt(0)")
    st(6)
    if stamp:
        A("    s_cmp_lg_u32 s21, 0")
    A("    s_cbranch_scc1 L_b1pub")
    A("    s_mov_b64 exec, 1")
    A("    buffer_atomic_add v70, v29, s[52:55], s79 offen sc0")
    A("    s_mov_b64 exec, -1")
    A("    s_waitcnt vmcnt(0)")
    A("L_bar1:")
    A("    s_barrier")
    A("L_spin0:")
    A("    s_sleep 1")
    A(f"    ds_read_b32 v70, v29 offset:{LDS_FLAG+12}")
    A("    s_waitcnt lgkmcnt(0)")
    A("    v_readfirstlane_b32 s30, v70")
    A("    s_cmp_eq_u32 s30, 0")
    A("    s_cbranch_scc1 L_spin0")
    st(7)
    if stamp:
        A("    s_mov_b32 s92, 0")
    A("    s_cmp_eq_u32 s30, 1")
    A("    s_cbranch_scc1 L_fin")
    A("    s_branch L_final")
    A("L_b1pub:")
    A("    s_mov_b64 exec, 1")
    A(f"    ds_add_rtn_u32 v71, v29, v70 offset:{LDS_FLAG+4}")
    A("    v_mov_b32 v70, 0x100")
    A("    s_waitcnt lgkmcnt(0)")
    A("    v_readfirstlane_b32 s30, v71")
    A("    s_cmp_lg_u32 s30, 3")
    A("    s_cbranch_scc1 L_spin")
    A("    buffer_atomic_add v70, v29, s[52:55], s79 offen sc0")
    A("    s_waitcnt vmcnt(0)")
    A("    v_readfirstlane_b32 s30, v70")
    A("    s_bfe_u32 s31, s30, 0x80008")
    A("    s_cmp_eq_u32 s31, 31")
    A("    s_cselect_b32 s31, 2, 1")
    A("    v_mov_b32 v70, s31")
    A(f"    ds_write_b32 v29, v70 offset:{LDS_FLAG+8}")
    A("    s_and_b32 s30, s30, 0xffff00ff")
    A("    s_mov_b32 s31, 1")
    A("    s_cmp_lg_u32 s30, 32")
    A("    s_cbranch_scc1 L_noclaim")
    A("    v_mov_b32 v70, 0x10000")
    A("    buffer_atomic_add v70, v29, s[52:55], s79 offen sc0")
    A("    s_waitcnt vmcnt(0)")
    A("    v_readfirstlane_b32 s30, v70")
    A("    s_lshr_b32 s30, s30, 16")
    A("    s_cmp_eq_u32 s30, 0")
    A("    s_cselect_b32 s31, 2, 1")
    A("L_noclaim:")
    A("    v_mov_b32 v70, s31")
    A(f"    ds_write_b32 v29, v70 offset:{LDS_FLAG+12}")
    A("L_spin:")
    A(f"    ds_read_b32 v70, v29 offset:{LDS_FLAG+8}")
    A("    s_waitcnt lgkmcnt(0)")
    A("    v_readfirstlane_b32 s30, v70")
    A("    s_cmp_eq_u32 s30, 0")
    A("    s_cbranch_scc1 L_spin")
    A("    s_mov_b64 exec, -1")
    st(7)
    if stamp:
        A("    s_mov_b32 s92, 0")
    A("    s_cmp_lg_u32 s30, 2")
    A("    s_cbranch_scc1 L_fin")
    A("L_final:")
    A("    buffer_load_dwordx2 v[160:161], v30, s[44:47], s73 offen sc1")
    for k in range(16):
        A(f"    buffer_load_dwordx4 v[{96+4*k}:{99+4*k}], v31, s[44:47], s77 offen sc1")
        if k < 15:
            A("    s_add_u32 s77, s77, 4096")
    A("    s_waitcnt vmcnt(16)")
    st(8)
    A("    v_max_f32_dpp v64, v160, v160 row_ror:1 row_mask:0xf bank_mask:0xf")
    nop(2)
    A("    v_max_f32_dpp v64, v64, v64 row_ror:2 row_mask:0xf bank_mask:0xf")
    nop(2)
    A("    v_max_f32_dpp v64, v64, v64 row_ror:4 row_mask:0xf bank_mask:0xf")
    nop(2)
    A("    v_max_f32_dpp v64, v64, v64 row_ror:8 row_mask:0xf bank_mask:0xf")
    A("    v_mov_b32 v65, v64")
    nop(2)
    A("    v_permlane16_swap_b32 v64, v65")
    A("    v_max_f32 v64, v64, v65")
    A("    v_sub_f32 v160, v160, v64")
    A("    v_exp_f32 v160, v160")
    nop(1)
    for k in range(16):
        A(f"    ds_bpermute_b32 v{164+k}, v89, v160 offset:{8*k}")
    A("    v_mul_f32 v72, v160, v161")
    nop(2)
    A("    v_add_f32_dpp v72, v72, v72 row_ror:1 row_mask:0xf bank_mask:0xf")
    nop(2)
    A("    v_add_f32_dpp v72, v72, v72 row_ror:2 row_mask:0xf bank_mask:0xf")
    nop(2)
    A("    v_add_f32_dpp v72, v72, v72 row_ror:4 row_mask:0xf bank_mask:0xf")
    nop(2)
    A("    v_add_f32_dpp v72, v72, v72 row_ror:8 row_mask:0xf bank_mask:0xf")
    A("    v_mov_b32 v73, v72")
    nop(2)
    A("    v_permlane16_swap_b32 v72, v73")
    A("    v_add_f32 v72, v72, v73")
    A("    v_rcp_f32 v72, v72")
    A("    s_waitcnt lgkmcnt(0)")
    for k in range(16):
        A(f"    s_waitcnt vmcnt({15-k})")
        for c in range(4):
            if k == 0:
                A(f"    v_mul_f32 v{64+c}, v164, v{96+c}")
            else:
                A(f"    v_fmac_f32 v{64+c}, v{164+k}, v{96+4*k+c}")
    for c in range(4):
        A(f"    v_mov_b32 v{76+c}, v{64+c}")
    nop(1)
    for c in range(4):
        A(f"    v_permlane32_swap_b32 v{64+c}, v{76+c}")
    for c in range(4):
        A(f"    v_add_f32 v{64+c}, v{64+c}, v{76+c}")
    for c in range(4):
        A(f"    v_mul_f32 v{64+c}, v{64+c}, v72")
    A("    v_cvt_pk_bf16_f32 v64, v64, v65")
    A("    v_cvt_pk_bf16_f32 v66, v66, v67")
    A("    s_mov_b32 exec_hi, 0")
    A("    buffer_store_short v64, v88, s[48:51], s76 offen")
    A("    buffer_store_short_d16_hi v64, v88, s[48:51], s76 offen offset:16")
    A("    buffer_store_short v66, v88, s[48:51], s76 offen offset:32")
    A("    buffer_store_short_d16_hi v66, v88, s[48:51], s76 offen offset:48")
    A("    s_mov_b64 exec, -1")
    A("L_fin:")
    if pad:
        A("L_pad:")
        A("    s_sleep 4")
        A("    s_memrealtime s[82:83]")
        A("    s_waitcnt lgkmcnt(0)")
        A("    s_sub_u32 s82, s82, s80")
        A(f"    s_cmp_lt_u32 s82, {pad}")
        A("    s_cbranch_scc1 L_pad")
    if stamp:
        A("    s_waitcnt vmcnt(0)")
        A("    s_memrealtime s[82:83]")
        A("    s_add_u32 s56, s18, 0x8000000")
        A("    s_addc_u32 s57, s19, 0")
        A("    s_mov_b32 s58, 0x100000")
        A("    s_mov_b32 s59, 0x20000")
        A("    s_lshl_b32 s30, s2, 3")
        A("    s_add_u32 s30, s30, s3")
        A("    s_lshl_b32 s31, s30, 6")
        A("    s_add_u32 s31, s31, 0x10000")
        A("    s_lshl_b32 s30, s30, 4")
        A("    s_waitcnt lgkmcnt(0)")
        A("    v_mov_b32 v8, s80"); A("    v_mov_b32 v9, s81"); A("    v_mov_b32 v10, s82"); A("    v_mov_b32 v11, s83")
        for k in range(12):
            A(f"    v_mov_b32 v{32+k}, s{84+k}")
        A("    s_mov_b64 exec, 1")
        A("    buffer_store_dwordx4 v[8:11], v29, s[56:59], s30 offen")
        A("    buffer_store_dwordx4 v[32:35], v29, s[56:59], s31 offen")
        A("    buffer_store_dwordx4 v[36:39], v29, s[56:59], s31 offen offset:16")
        A("    buffer_store_dwordx4 v[40:43], v29, s[56:59], s31 offen offset:32")
    A("L_end:")
    A("    s_endpgm")
    A('.section .rodata,"a"')
    A(".p2align 6")
    A(f".amdhsa_kernel {NAME}_kernel")
    A("  .amdhsa_next_free_vgpr 256")
    A("  .amdhsa_next_free_sgpr 100")
    A("  .amdhsa_accum_offset 256")
    A("  .amdhsa_group_segment_fixed_size 0")
    A("  .amdhsa_kernarg_size 64")
    A("  .amdhsa_user_sgpr_count 2")
    A("  .amdhsa_user_sgpr_kernarg_segment_ptr 1")
    A("  .amdhsa_system_sgpr_workgroup_id_x 1")
    A(".end_amdhsa_kernel")
    return "\n".join(L) + "\n"


if __name__ == "__main__":
    open("v6.s", "w").write(gen())
    open("v6_st.s", "w").write(gen(stamp=True))
    open("v6_n4_st.s", "w").write(gen(stamp=True, nslot=4))
```
